```python
import torch

def _softmax(x, axis=-1):
    return torch.softmax(x, dim=axis)
def _gelu(x):
    return torch.nn.functional.gelu(x, approximate="tanh")
def _silu(x):
    return torch.nn.functional.silu(x)
def _sigmoid(x):
    return torch.sigmoid(x)
def _layernorm(x, axis=-1, eps=1e-5):
    m = x.mean(dim=axis, keepdim=True)
    v = x.var(dim=axis, keepdim=True, unbiased=False)
    return (x - m) / torch.sqrt(v + eps)
def _scatter_add(tgt, idx, src, axis=0):
    return tgt.clone().index_add_(axis, idx, src)
def _segment_sum(src, seg, n):
    out = torch.zeros((n,) + src.shape[1:], dtype=src.dtype)
    return out.index_add_(0, seg, src)
def _pad(x, pw):
    flat = tuple(v for pair in reversed(pw) for v in pair)
    return torch.nn.functional.pad(x, flat)

kernel_name = 'standalone__w4a16_gemm_dequant__prompt'

def setup_inputs():

    _w = (lambda a: (lambda t: t.to(torch.bfloat16) if t.is_floating_point() else t)(torch.as_tensor(a)))
    B, S, D, F = 1, 2048, 576, 4608
    G = -1 if -1 > 0 else D
    D = (D // G) * G
    ng = D // G
    qw = torch.randint(0, 16, (D, F)).to(torch.int32)
    return {
        "x": _w((lambda *s: torch.randn(*s, dtype=torch.bfloat16) * 0.05)(B, S, D)),
        "qw": _w(qw),
        "scales": _w(torch.abs((lambda *s: torch.randn(*s, dtype=torch.bfloat16) * 0.05)(ng, F)) + 0.01),
        "zeros": _w(torch.full((ng, F), 8.0, dtype=float)),
    }

def reference(x, qw, scales, zeros):
    B, S, D = x.shape
    ng, F = scales.shape
    G = D // ng
    s = (lambda x, n, axis: torch.repeat_interleave(x, n, dim=axis))(scales, G, axis=0)
    z = (lambda x, n, axis: torch.repeat_interleave(x, n, dim=axis))(zeros, G, axis=0)
    w = ((lambda x, dt: x.to(dt))(qw, x.dtype) - z) * s
    return x @ w
```

```python
import argparse
import sys

NRT = 19
NKS = 18
NSL = 9
XROW = 1152
QROW = 18432
OROW = 9216
LDS_PAD = 1024

S_X, S_Q, S_O, S_SC, S_ZR = 4, 8, 12, 16, 20
S_PTR = 24
S_CG, S_MP, S_ST, S_W, S_BASE, S_BASEQ, S_QOFF, S_T0, S_OOFF, S_T1 = 34, 35, 36, 37, 38, 39, 40, 41, 42, 43
S_RT = 44
S_T2, S_T3 = 64, 65
S_DBG = 68
S_TM = 72

V_LANE, V_C, V_G = 1, 2, 3
V_OFFW = 4
V_OFFX, V_OFFXQ = 12, 13
V_LDSA = 14
V_S = 20
V_ZS = 22
V_OFFO = 24
V_T = 25
V_EP = [26, 34]
V_Z = 42
V_SR = 44
V_T2 = 46
V_Q = 48
V_W = 112

A_ACC = 0
A_FR = 152


class I:
    __slots__ = ("t", "k", "wr", "rd", "tag")

    def __init__(self, t, k, wr=(), rd=(), tag=None):
        self.t, self.k, self.wr, self.rd, self.tag = t, k, set(wr), set(rd), tag


def vr(a, n=1):
    return [f"v{a+i}" for i in range(n)]


def ar(a, n=1):
    return [f"a{a+i}" for i in range(n)]


def V(a, n):
    return f"v[{a}:{a+n-1}]"


def A(a, n):
    return f"a[{a}:{a+n-1}]"


class Gen:
    def __init__(self, o):
        self.o = o
        self.out = []

    def wfrag(self, ks, t):
        return V_W + (ks * 2 + t) * 4

    def acc(self, r, t):
        return A_ACC + (r * 2 + t) * 4

    def qreg(self, ks, j):
        return V_Q + (ks % self.o.D) * 16 + j * 2

    def build(self, general):
        o = self.o
        R1, P2G, Fd, G, D, F = o.R1, o.P2G, o.Fd, o.G, o.D, o.F
        epochs = []
        for s in range(NSL):
            units = [(r, 2 * s) for r in range(R1)] + [(r, 2 * s + 1) for r in range(R1)]
            blocks = [(r, s) for r in range(R1)]
            epochs.append(dict(units=units, blocks=blocks, ph=1))
        r = R1
        while r < NRT:
            grp = list(range(r, min(NRT, r + P2G)))
            units = [(rr, ks) for ks in range(NKS) for rr in grp]
            blocks = [(rr, s) for s in range(NSL) for rr in grp]
            epochs.append(dict(units=units, blocks=blocks, ph=2))
            r += P2G
        units = [u for e in epochs for u in e["units"]]
        U = len(units)
        ufirst = []
        c = 0
        for e in epochs:
            ufirst.append(c)
            c += len(e["units"])
        NSLOT = o.NSLOT
        slot = {}
        prev_user = {}
        need_after = {}
        pos = 0
        for ei, e in enumerate(epochs):
            n = len(e["blocks"])
            if pos + n > NSLOT:
                pos = 0
            for b in e["blocks"]:
                slot[b] = pos
                need_after[b] = prev_user[pos] + o.FREE if pos in prev_user else -1
                prev_user[pos] = ei
                pos += 1
        steps = []
        for ei, e in enumerate(epochs):
            bl = list(e["blocks"])
            i = 0
            while i < len(bl):
                b = bl[i]
                if i + 1 < len(bl) and bl[i + 1] == (b[0] + 1, b[1]) and slot[bl[i + 1]] == slot[b] + 1:
                    steps.append(dict(kind="pair", b=b, epoch=ei, after=max(need_after[b], need_after[bl[i + 1]])))
                    i += 2
                else:
                    steps.append(dict(kind="quad", b=b, epoch=ei, after=need_after[b]))
                    i += 1

        def dma_items(st):
            r, s = st["b"]
            dest = LDS_PAD + slot[st["b"]] * 2048 - s * 128
            tag = ("dma", st["epoch"])
            mod = (" " + o.xmod) if o.xmod else ""
            if st["kind"] == "pair":
                return [
                    [I(f"s_add_u32 m0, s{S_BASE}, {dest}", "salu", wr=["m0"])],
                    [I(f"buffer_load_dwordx4 v{V_OFFX}, s[{S_X}:{S_X+3}], s{S_RT+r} offen offset:{s*128}{mod} lds",
                       "vmem", rd=["m0"], tag=tag)],
                ]
            return [
                [I(f"s_add_u32 m0, s{S_BASEQ}, {dest}", "salu", wr=["m0"])],
                [I("s_mov_b32 exec_hi, 0", "salu"),
                 I(f"buffer_load_dwordx4 v{V_OFFXQ}, s[{S_X}:{S_X+3}], s{S_RT+r} offen offset:{s*128}{mod} lds",
                   "vmem", rd=["m0"], tag=tag),
                 I("s_mov_b32 exec_hi, -1", "salu")],
            ]

        def q_items(ks):
            it = [[I(f"s_mov_b32 s{S_QOFF}, {ks*32*QROW}", "salu")]]
            mod = (" " + o.qmod) if o.qmod else ""
            for j in range(8):
                q = self.qreg(ks, j)
                it.append([I(f"buffer_load_dwordx2 {V(q,2)}, v{V_OFFW+j}, s[{S_Q}:{S_Q+3}], s{S_QOFF} offen{mod}",
                             "vmem", wr=vr(q, 2), tag=("q", ks))])
            return it

        def deq_items(ks):
            it = [[I(("wait_vm", ("q", ks)), "wait")]]
            for t in range(2):
                for rr in range(4):
                    a = self.qreg(ks, 2 * rr) + t
                    b = self.qreg(ks, 2 * rr + 1) + t
                    w = self.wfrag(ks, t) + rr
                    if not general:
                        for x in (a, b):
                            it.append([I(f"v_fma_mix_f32 v{x}, v{x}, v{V_S+t}, v{V_ZS+t} op_sel_hi:[1,0,0]",
                                         "valu", wr=vr(x), rd=vr(x))])
                        it.append([I(f"v_cvt_pk_bf16_f32 v{w}, v{a}, v{b}", "valu", wr=vr(w), rd=vr(a) + vr(b))])
                    else:
                        for x in (a, b):
                            it.append([I(f"v_cvt_f32_u32 v{x}, v{x}", "valu", wr=vr(x), rd=vr(x))])
                        for x in (a, b):
                            it.append([I(f"v_add_f32 v{x}, v{x}, v{V_Z+t}", "valu", wr=vr(x), rd=vr(x))])
                        it.append([I(f"v_cvt_pk_bf16_f32 v{a}, v{a}, v{b}", "valu", wr=vr(a), rd=vr(a) + vr(b))])
                        it.append([I(f"v_and_b32 v{b}, 0xffff0000, v{a}", "valu", wr=vr(b), rd=vr(a))])
                        it.append([I(f"v_lshlrev_b32 v{a}, 16, v{a}", "valu", wr=vr(a), rd=vr(a))])
                        for x in (a, b):
                            it.append([I(f"v_mul_f32 v{x}, v{x}, v{V_SR+t}", "valu", wr=vr(x), rd=vr(x))])
                        it.append([I(f"v_cvt_pk_bf16_f32 v{w}, v{a}, v{b}", "valu", wr=vr(w), rd=vr(a) + vr(b))])
            return it

        self.ep_cnt = 0

        def ep_items(r):
            T = V_EP[self.ep_cnt % 2]
            self.ep_cnt += 1
            it = []
            for t in range(2):
                for i in range(4):
                    a = self.acc(r, t) + i
                    it.append([I(f"v_accvgpr_read_b32 v{T+t*4+i}, a{a}", "valu", wr=vr(T + t * 4 + i), rd=ar(a))])
            for i in range(4):
                it.append([I(f"v_cvt_pk_bf16_f32 v{T+i}, v{T+i}, v{T+4+i}", "valu", wr=vr(T + i),
                             rd=vr(T + i) + vr(T + 4 + i))])
            mod = (" " + o.smod) if o.smod else ""
            it.append([I(f"s_mov_b32 s{S_OOFF}, {r*16*OROW}", "salu"),
                       I(f"buffer_store_dwordx4 {V(T,4)}, v{V_OFFO}, s[{S_O}:{S_O+3}], s{S_OOFF} offen{mod}",
                         "vmem", rd=vr(T, 4), tag=("st", r))])
            return it

        def read_item(u):
            r, ks = units[u]
            s, h = ks >> 1, ks & 1
            addr = LDS_PAD + slot[(r, s)] * 2048
            seg, off = addr >> 16, addr & 0xFFFF
            fr = A_FR + (u % F) * 4
            return I(f"ds_read_b128 {A(fr,4)}, v{V_LDSA+h*3+seg} offset:{off}", "ds", wr=ar(fr, 4), tag=("rd", u))

        NM = 2 * U
        gaps = [[] for _ in range(NM + 1)]
        pro = []

        def spread(items, g0, g1):
            n = len(items)
            if n == 0:
                return
            g1 = max(g1, g0 + 1)
            for i, it in enumerate(items):
                g = g0 + (i * (g1 - g0)) // n
                gaps[min(g, NM)].append(it)

        epoch_of_unit = {}
        for ei, e in enumerate(epochs):
            for i in range(len(e["units"])):
                epoch_of_unit[ufirst[ei] + i] = ei
        bar_gap = {}
        for u in range(U):
            ei = epoch_of_unit[u]
            first = (u == ufirst[ei])
            grp = []
            if first:
                grp.append(I(("wait_vm", ("dma", ei)), "wait"))
                grp.append(I("s_barrier", "other", tag=("bar", ei)))
            grp.append(read_item(u))
            if u < Fd:
                pro.append(("late", grp))
                if first:
                    bar_gap[ei] = -1
            else:
                g = 2 * (u - Fd) + 1
                gaps[g].append(grp)
                if first:
                    bar_gap[ei] = g
        for u in range(0, U, G):
            last = min(U - 1, u + G - 1)
            gaps[2 * u].insert(0, [I(("wait_lgkm", last), "wait")])
        kfirst = {}
        for u, (r, ks) in enumerate(units):
            if u < NSL * 2 * R1 and ks not in kfirst:
                kfirst[ks] = 2 * u
        klen = 2 * R1
        for ks in range(NKS):
            g0 = kfirst[ks]
            if ks + 1 < NKS:
                spread(deq_items(ks + 1), g0, g0 + klen - 1)
            if ks + D < NKS:
                spread(q_items(ks + D), g0, g0 + klen)
        si = 0
        pro_dma = {}
        while si < len(steps) and steps[si]["after"] < 0:
            pro_dma.setdefault(steps[si]["epoch"], []).append(steps[si])
            si += 1
        for ei in range(len(epochs)):
            todo = []
            while si < len(steps) and steps[si]["after"] <= ei:
                todo.append(steps[si])
                si += 1
            if todo:
                g0 = bar_gap[ei] + 1
                gend = bar_gap[ei + 1] if ei + 1 < len(epochs) else NM
                items = [x for st in todo for x in dma_items(st)]
                span = min(gend - g0, int(len(items) * o.dma_spread))
                spread(items, g0, g0 + span)
                for st in todo:
                    assert st["epoch"] > ei, "DMA issued too late"
        assert si == len(steps)
        last_unit = {}
        for u, (r, ks) in enumerate(units):
            if ks == NKS - 1:
                last_unit[r] = u
        epq = sorted(range(NRT), key=lambda r: last_unit[r])
        gcur = 0
        for r in epq:
            g0 = max(gcur, 2 * last_unit[r] + 2 + 3)
            items = ep_items(r)
            if g0 >= NM:
                for it in items:
                    gaps[NM].append(it)
            else:
                span = int(len(items) * o.ep_spread)
                spread(items, g0, g0 + span)
                gcur = g0 + span
        P = []
        for k in range(D):
            if k < NKS:
                P += q_items(k)
            for st in pro_dma.get(k, []):
                P += dma_items(st)
        for k in sorted(pro_dma):
            if k >= D:
                for st in pro_dma[k]:
                    P += dma_items(st)
        self.P = P
        self.P2 = deq_items(0) + [g for (_, g) in pro]
        seen = set()
        main = []
        for m in range(NM):
            for it in gaps[m]:
                main += it
            u, t = m >> 1, m & 1
            r, ks = units[u]
            fr = A_FR + (u % F) * 4
            ac = self.acc(r, t)
            w = self.wfrag(ks, t)
            c = A(ac, 4) if (r, t) in seen else "0"
            seen.add((r, t))
            main.append(I(f"v_mfma_f32_16x16x32_bf16 {A(ac,4)}, {V(w,4)}, {A(fr,4)}, {c}", "mfma",
                          wr=ar(ac, 4), rd=vr(w, 4) + ar(fr, 4) + ar(ac, 4)))
        for it in gaps[NM]:
            main += it
        self.main = main

    def emit_stream(self, stream, state):
        out = self.out
        for ins in stream:
            if ins.k == "wait":
                kind, arg = ins.t
                if kind == "wait_vm":
                    idx = [i for i, tg in enumerate(state["vm"]) if tg == arg]
                    assert idx, arg
                    n = len(state["vm"]) - 1 - idx[-1]
                    if n >= state["vm_bound"]:
                        continue
                    n = min(n, 63)
                    state["vm_bound"] = n
                    txt = f"s_waitcnt vmcnt({n})"
                else:
                    idx = state["rd"].index(("rd", arg))
                    n = len(state["rd"]) - 1 - idx
                    assert n <= 15, n
                    txt = f"s_waitcnt lgkmcnt({n})"
                self.put(I(txt, "other"), state)
                continue
            if ins.k == "vmem":
                state["vm"].append(ins.tag)
                state["vm_bound"] += 1
            if ins.k == "ds":
                state["rd"].append(ins.tag)
            self.put(ins, state)

    def put(self, ins, state):
        h = state["hist"]
        need = 0

        def dist_back(pred, maxd):
            d = 0
            for p, wgt in reversed(h):
                if pred(p):
                    return d
                d += wgt
                if d >= maxd:
                    return None
            return None
        if ins.k == "mfma":
            d = dist_back(lambda p: p.k == "valu" and (p.wr & ins.rd), 2)
            if d is not None:
                need = max(need, 2 - d)
        if ins.k in ("valu", "vmem", "ds"):
            regs = ins.rd | ins.wr
            d = dist_back(lambda p: p.k == "mfma" and (p.wr & regs), 8)
            if d is not None:
                need = max(need, 8 - d)
        if ins.k == "vmem" and "m0" in ins.rd:
            d = dist_back(lambda p: "m0" in p.wr, 1)
            if d is not None:
                need = max(need, 1 - d)
        if ins.k == "valu":
            d = dist_back(lambda p: p.k == "vmem" and "store" in p.t and (p.rd & ins.wr), 2)
            if d is not None:
                need = max(need, 2 - d)
        if need > 0:
            n = I(f"s_nop {need-1}", "other")
            self.out.append("    " + n.t)
            h.append((n, need))
        self.out.append("    " + ins.t)
        h.append((ins, 1))
        if len(h) > 64:
            del h[:32]

    def raw(self, s):
        for l in s.strip("\n").split("\n"):
            self.out.append(l)

    def generate(self):
        o = self.o
        lds = LDS_PAD + o.NSLOT * 2048
        assert lds <= 163840
        self.raw(f"""; w4a16 dequant GEMM, generated by work/gen.py  args: {' '.join(sys.argv[1:])}
; @launch grid=(252,1,1) block=(256,1,1) lds={lds}
.amdgcn_target "amdgcn-amd-amdhsa--gfx950"
.text
.globl standalone__w4a16_gemm_dequant__prompt_kernel
.p2align 8
.type standalone__w4a16_gemm_dequant__prompt_kernel,@function
standalone__w4a16_gemm_dequant__prompt_kernel:
    s_cmp_ge_u32 s2, 252
    s_cbranch_scc1 L_done
    s_load_dwordx8 s[{S_PTR}:{S_PTR+7}], s[0:1], 0
    s_load_dwordx2 s[{S_PTR+8}:{S_PTR+9}], s[0:1], 32
    v_and_b32 v{V_LANE}, 63, v0
    v_lshrrev_b32 v{V_T}, 6, v0
    v_and_b32 v{V_C}, 15, v0
    v_readfirstlane_b32 s{S_W}, v{V_T}
    v_lshrrev_b32 v{V_G}, 4, v{V_LANE}
    s_and_b32 s{S_T0}, s2, 7
    s_lshr_b32 s{S_T1}, s2, 3
    s_lshl_b32 s{S_T2}, s{S_T0}, 5
    s_add_u32 s{S_T1}, s{S_T1}, s{S_T2}
    s_sub_i32 s{S_T0}, s{S_T0}, 4
    s_max_i32 s{S_T0}, s{S_T0}, 0
    s_sub_u32 s{S_T1}, s{S_T1}, s{S_T0}          ; p
    s_mul_i32 s{S_CG}, s{S_T1}, 9363
    s_lshr_b32 s{S_CG}, s{S_CG}, 16
    s_mul_i32 s{S_T0}, s{S_CG}, 7
    s_sub_u32 s{S_MP}, s{S_T1}, s{S_T0}
    s_mul_i32 s{S_ST}, s{S_MP}, 1163
    s_lshr_b32 s{S_ST}, s{S_ST}, 6
    s_lshl_b32 s{S_T0}, s{S_CG}, 7
    s_lshl_b32 s{S_T1}, s{S_W}, 5
    s_add_u32 s{S_T3}, s{S_T0}, s{S_T1}          ; colbase
    v_mul_u32_u24 v{V_OFFW}, {8*QROW}, v{V_G}
    v_lshlrev_b32 v{V_T}, 3, v{V_C}
    v_add_u32 v{V_OFFW}, v{V_OFFW}, v{V_T}
    s_lshl_b32 s{S_T0}, s{S_T3}, 2
    v_add_u32 v{V_OFFW}, s{S_T0}, v{V_OFFW}""")
        for j in range(1, 8):
            self.raw(f"    v_add_u32 v{V_OFFW+j}, {j*QROW}, v{V_OFFW}")
        self.raw(f"""
    v_lshlrev_b32 v{V_T}, 2, v{V_C}
    s_lshl_b32 s{S_T0}, s{S_T3}, 1
    v_add_u32 v{V_T}, s{S_T0}, v{V_T}
    s_and_b32 s{S_T0}, s{S_W}, 1
    s_lshr_b32 s{S_T1}, s{S_W}, 1
    v_lshrrev_b32 v{V_T2}, 3, v{V_LANE}
    s_lshl_b32 s{S_T2}, s{S_T0}, 3
    v_add_u32 v{V_T2}, s{S_T2}, v{V_T2}
    v_lshrrev_b32 v{V_T2+1}, 1, v{V_T2}
    v_xor_b32 v{V_T2+1}, v{V_T2+1}, v{V_LANE}
    v_and_b32 v{V_T2+1}, 7, v{V_T2+1}
    v_lshlrev_b32 v{V_T2+1}, 4, v{V_T2+1}
    v_mul_u32_u24 v{V_OFFX}, {XROW}, v{V_T2}
    v_add_u32 v{V_OFFX}, v{V_OFFX}, v{V_T2+1}
    s_add_u32 s{S_T2}, s{S_ST}, s{S_T1}
    s_mul_i32 s{S_T2}, s{S_T2}, {16*XROW}
    v_add_u32 v{V_OFFX}, s{S_T2}, v{V_OFFX}
    s_lshl_b32 s{S_BASE}, s{S_T0}, 10
    s_lshl_b32 s{S_T1}, s{S_T1}, 11
    s_add_u32 s{S_BASE}, s{S_BASE}, s{S_T1}
    v_lshrrev_b32 v{V_T2}, 3, v{V_LANE}
    v_and_b32 v{V_T2}, 3, v{V_T2}
    s_lshl_b32 s{S_T2}, s{S_W}, 2
    v_add_u32 v{V_T2}, s{S_T2}, v{V_T2}
    v_lshrrev_b32 v{V_T2+1}, 1, v{V_T2}
    v_xor_b32 v{V_T2+1}, v{V_T2+1}, v{V_LANE}
    v_and_b32 v{V_T2+1}, 7, v{V_T2+1}
    v_lshlrev_b32 v{V_T2+1}, 4, v{V_T2+1}
    v_mul_u32_u24 v{V_OFFXQ}, {XROW}, v{V_T2}
    v_add_u32 v{V_OFFXQ}, v{V_OFFXQ}, v{V_T2+1}
    s_mul_i32 s{S_T2}, s{S_ST}, {16*XROW}
    v_add_u32 v{V_OFFXQ}, s{S_T2}, v{V_OFFXQ}
    s_lshl_b32 s{S_BASEQ}, s{S_W}, 9
    v_lshrrev_b32 v{V_T2}, 1, v{V_C}
    v_xor_b32 v{V_T2}, v{V_T2}, v{V_G}
    v_lshlrev_b32 v{V_T2}, 4, v{V_T2}
    v_lshlrev_b32 v{V_LDSA}, 7, v{V_C}
    v_add_u32 v{V_LDSA}, v{V_LDSA}, v{V_T2}
    v_add_u32 v{V_LDSA+1}, 0x10000, v{V_LDSA}
    v_add_u32 v{V_LDSA+2}, 0x20000, v{V_LDSA}
    v_xor_b32 v{V_LDSA+3}, 64, v{V_LDSA}
    v_xor_b32 v{V_LDSA+4}, 64, v{V_LDSA+1}
    v_xor_b32 v{V_LDSA+5}, 64, v{V_LDSA+2}
    v_mul_u32_u24 v{V_OFFO}, {OROW}, v{V_C}
    v_lshlrev_b32 v{V_T2}, 4, v{V_G}
    v_add_u32 v{V_OFFO}, v{V_OFFO}, v{V_T2}
    s_mul_i32 s{S_T2}, s{S_ST}, {16*OROW}
    s_lshl_b32 s{S_T0}, s{S_T3}, 1
    s_add_u32 s{S_T2}, s{S_T2}, s{S_T0}
    v_add_u32 v{V_OFFO}, s{S_T2}, v{V_OFFO}""")
        for r in range(NRT):
            self.raw(f"    s_mov_b32 s{S_RT+r}, {r*16*XROW}")
        self.raw(f"""
    s_mov_b32 s{S_X+2}, {2048*XROW}
    s_mov_b32 s{S_X+3}, 0x00020000
    s_mov_b32 s{S_Q+2}, {576*QROW}
    s_mov_b32 s{S_Q+3}, 0x00020000
    s_mov_b32 s{S_O+2}, {2048*OROW}
    s_mov_b32 s{S_O+3}, 0x00020000
    s_mov_b32 s{S_SC+2}, 9216
    s_mov_b32 s{S_SC+3}, 0x00020000
    s_mov_b32 s{S_ZR+2}, 9216
    s_mov_b32 s{S_ZR+3}, 0x00020000
    s_waitcnt lgkmcnt(0)
    s_mov_b32 s{S_X}, s{S_PTR}
    s_mov_b32 s{S_X+1}, s{S_PTR+1}
    s_mov_b32 s{S_Q}, s{S_PTR+2}
    s_mov_b32 s{S_Q+1}, s{S_PTR+3}
    s_mov_b32 s{S_SC}, s{S_PTR+4}
    s_mov_b32 s{S_SC+1}, s{S_PTR+5}
    s_mov_b32 s{S_ZR}, s{S_PTR+6}
    s_mov_b32 s{S_ZR+1}, s{S_PTR+7}
    s_mov_b32 s{S_O}, s{S_PTR+8}
    s_mov_b32 s{S_O+1}, s{S_PTR+9}
    buffer_load_dword v{V_SR}, v{V_T}, s[{S_SC}:{S_SC+3}], 0 offen
    buffer_load_dword v{V_Z}, v{V_T}, s[{S_ZR}:{S_ZR+3}], 0 offen""")
        self.build(general=False)
        st = dict(vm=[("sz", 0), ("sz", 0)], vm_bound=2, rd=[], hist=[])
        self.emit_stream([x for it in self.P for x in it], st)
        self.emit_stream([I(("wait_vm", ("sz", 0)), "wait")], st)
        self.raw(f"""
    v_and_b32 v{V_SR+1}, 0xffff0000, v{V_SR}
    v_lshlrev_b32 v{V_SR}, 16, v{V_SR}
    v_and_b32 v{V_Z+1}, 0xffff0000, v{V_Z}
    v_lshlrev_b32 v{V_Z}, 16, v{V_Z}
    v_mul_f32 v{V_S}, 0x4b800000, v{V_SR}
    v_mul_f32 v{V_S+1}, 0x4b800000, v{V_SR+1}
    v_mul_f32 v{V_ZS}, v{V_Z}, v{V_SR}
    v_mul_f32 v{V_ZS+1}, v{V_Z+1}, v{V_SR+1}
    v_xor_b32 v{V_ZS}, 0x80000000, v{V_ZS}
    v_xor_b32 v{V_ZS+1}, 0x80000000, v{V_ZS+1}
    s_mov_b64 s[{S_T2}:{S_T3}], -1""")
        for t in range(2):
            self.raw(f"""
    v_mul_f32 v{V_T2}, 8.0, v{V_Z+t}
    v_rndne_f32 v{V_T2+1}, v{V_T2}
    v_cmp_eq_f32 vcc, v{V_T2}, v{V_T2+1}
    s_and_b64 s[{S_T2}:{S_T3}], s[{S_T2}:{S_T3}], vcc
    v_mov_b32 v{V_T2}, 0x41800000
    v_cmp_le_f32 vcc, |v{V_Z+t}|, v{V_T2}
    s_and_b64 s[{S_T2}:{S_T3}], s[{S_T2}:{S_T3}], vcc
    v_mov_b32 v{V_T2}, 0x0d800000
    v_cmp_ge_f32 vcc, |v{V_SR+t}|, v{V_T2}
    s_and_b64 s[{S_T2}:{S_T3}], s[{S_T2}:{S_T3}], vcc
    v_mov_b32 v{V_T2}, 0x71800000
    v_cmp_le_f32 vcc, |v{V_SR+t}|, v{V_T2}
    s_and_b64 s[{S_T2}:{S_T3}], s[{S_T2}:{S_T3}], vcc""")
        self.raw(f"""
    v_xor_b32 v{V_Z}, 0x80000000, v{V_Z}
    v_xor_b32 v{V_Z+1}, 0x80000000, v{V_Z+1}
    s_cmp_eq_u64 s[{S_T2}:{S_T3}], -1""")
        if o.force_general:
            self.raw("    s_branch L_general")
        else:
            self.raw("    s_cbranch_scc0 L_general")
        import copy
        st_g = copy.deepcopy(st)
        st["hist"] = []
        self.emit_stream([x for it in self.P2 for x in it] + self.main, st)
        self.raw("    s_endpgm")
        self.raw("L_general:")
        self.build(general=True)
        st_g["hist"] = []
        self.emit_stream([x for it in self.P2 for x in it] + self.main, st_g)
        self.raw(f"""
L_done:
    s_endpgm
.section .rodata,"a"
.p2align 6
.amdhsa_kernel standalone__w4a16_gemm_dequant__prompt_kernel
  .amdhsa_next_free_vgpr 512
  .amdhsa_next_free_sgpr 102
  .amdhsa_accum_offset 256
  .amdhsa_group_segment_fixed_size 0
  .amdhsa_kernarg_size 56
  .amdhsa_user_sgpr_count 2
  .amdhsa_user_sgpr_kernarg_segment_ptr 1
  .amdhsa_system_sgpr_workgroup_id_x 1
  .amdhsa_float_denorm_mode_32 3
.end_amdhsa_kernel""")
        return "\n".join(self.out) + "\n"


def main():
    ap = argparse.ArgumentParser()
    ap.add_argument("-o", default="standalone__w4a16_gemm_dequant__prompt.s")
    ap.add_argument("--R1", type=int, default=19)
    ap.add_argument("--P2G", type=int, default=2)
    ap.add_argument("--Fd", type=int, default=6)
    ap.add_argument("--F", type=int, default=12)
    ap.add_argument("--G", type=int, default=2)
    ap.add_argument("--D", type=int, default=4)
    ap.add_argument("--NSLOT", type=int, default=76)
    ap.add_argument("--FREE", type=int, default=2)
    ap.add_argument("--dma_spread", type=float, default=1.0)
    ap.add_argument("--ep_spread", type=float, default=0.6)
    ap.add_argument("--smod", default="")
    ap.add_argument("--xmod", default="")
    ap.add_argument("--qmod", default="")
    ap.add_argument("--force_general", action="store_true")
    o = ap.parse_args()
    assert o.F >= o.Fd + o.G + 1 and A_FR + 4 * o.F <= 256
    txt = Gen(o).generate()
    open(o.o, "w").write(txt)
    print("wrote", o.o, len(txt), "bytes", txt.count("\n"), "lines")


if __name__ == "__main__":
    main()
```

```python
import sys
s=open(sys.argv[1]).read()
a="    s_cbranch_scc1 L_done\n"
i=s.index(a)+len(a)
s=s[:i]+"    s_memrealtime s[92:93]\n    s_memtime s[94:95]\n"+s[i:]
end="""    s_waitcnt vmcnt(0)
    s_memrealtime s[96:97]
    s_memtime s[98:99]
    s_load_dwordx2 s[24:25], s[0:1], 40
    s_waitcnt lgkmcnt(0)
    s_mov_b32 s26, 256
    s_mov_b32 s27, 0x00020000
    s_sub_u32 s98, s98, s94
    s_not_b32 s92, s92
    s_mov_b64 exec, 1
    v_mov_b32 v0, 0
    v_mov_b32 v1, s96
    v_mov_b32 v2, s92
    v_mov_b32 v3, s98
    s_not_b32 s98, s98
    v_mov_b32 v4, s98
    s_not_b32 s92, s92
    v_mov_b32 v5, s92
    s_not_b32 s96, s96
    v_mov_b32 v6, s96
    s_nop 1
    buffer_atomic_umax v1, v0, s[24:27], 0 offen
    buffer_atomic_umax v2, v0, s[24:27], 0 offen offset:4
    buffer_atomic_umax v3, v0, s[24:27], 0 offen offset:8
    buffer_atomic_umax v4, v0, s[24:27], 0 offen offset:12
    buffer_atomic_umax v5, v0, s[24:27], 0 offen offset:16
    buffer_atomic_umax v6, v0, s[24:27], 0 offen offset:20
"""
i=s.index("    s_endpgm\nL_general:")
s=s[:i]+end+s[i:]
open(sys.argv[2],'w').write(s)
```
